```python
import torch

def _softmax(x, axis=-1):
    return torch.softmax(x, dim=axis)
def _gelu(x):
    return torch.nn.functional.gelu(x, approximate="tanh")
def _silu(x):
    return torch.nn.functional.silu(x)
def _sigmoid(x):
    return torch.sigmoid(x)
def _layernorm(x, axis=-1, eps=1e-5):
    m = x.mean(dim=axis, keepdim=True)
    v = x.var(dim=axis, keepdim=True, unbiased=False)
    return (x - m) / torch.sqrt(v + eps)
def _scatter_add(tgt, idx, src, axis=0):
    return tgt.clone().index_add_(axis, idx, src)
def _segment_sum(src, seg, n):
    out = torch.zeros((n,) + src.shape[1:], dtype=src.dtype)
    return out.index_add_(0, seg, src)
def _pad(x, pw):
    flat = tuple(v for pair in reversed(pw) for v in pair)
    return torch.nn.functional.pad(x, flat)

kernel_name = 'gated_mix__linear_attn_block__dense_activation_gelu__prompt'

def setup_inputs():

    _w = (lambda a: (lambda t: t.to(torch.bfloat16) if t.is_floating_point() else t)(torch.as_tensor(a)))
    def _A_setup():
        B, S, D = 1, 2048, 640
        return {
            "x": _w((lambda *s: torch.randn(*s, dtype=torch.bfloat16) * 0.05)(B, S, D)),
            "wqkv": _w((lambda *s: torch.randn(*s, dtype=torch.bfloat16) * 0.8)(D, 3 * D)),
            "wo": _w((lambda *s: torch.randn(*s, dtype=torch.bfloat16) * 0.05)(D, D)),
        }
    _A_in = _A_setup()

    def _B_setup():
        B, S, D, F = 1, 2048, 640, 1728
        return {
            "x": _w((lambda *s: torch.randn(*s, dtype=torch.bfloat16) * 0.05)(B, S, D)),
            "w1": _w((lambda *s: torch.randn(*s, dtype=torch.bfloat16) * 3.2)(D, F) * (D ** -0.5)),
            "b1": _w((lambda *s: torch.randn(*s, dtype=torch.bfloat16) * 3.2)(F) * 0.01),
            "w2": _w((lambda *s: torch.randn(*s, dtype=torch.bfloat16) * 0.4)(F, D) * (F ** -0.5)),
            "b2": _w((lambda *s: torch.randn(*s, dtype=torch.bfloat16) * 0.8)(D) * 0.01),
        }
    _B_in = _B_setup()

    return {
        "A_x": _A_in["x"],
        "A_wqkv": _A_in["wqkv"],
        "A_wo": _A_in["wo"],
        "B_x": _B_in["x"],
        "B_w1": _B_in["w1"],
        "B_b1": _B_in["b1"],
        "B_w2": _B_in["w2"],
        "B_b2": _B_in["b2"],
        "gate_w": _w((lambda *s: torch.randn(*s, dtype=torch.bfloat16) * 0.05)(640) * 16.0),
    }

def reference(A_x, A_wqkv, A_wo, B_x, B_w1, B_b1, B_w2, B_b2, gate_w):
    def _A_ref(x, wqkv, wo):
        B, S, D = x.shape
        H = 32; Dh = D // H
        qkv = (lambda x, *d: x.permute(*d))((x @ wqkv).reshape(B, S, 3, H, Dh), 2, 0, 3, 1, 4)
        q, k, v = qkv[0], qkv[1], qkv[2]
        phi = lambda t: torch.where(t > 0, t + 1, torch.exp(t)) + 1e-6
        pq, pk = phi(q), phi(k)
        kv = torch.einsum("bhsd,bhse->bhde", pk, v)
        z = torch.einsum("bhsd->bhd", pk)
        num = torch.einsum("bhqd,bhde->bhqe", pq, kv)
        den = torch.einsum("bhqd,bhd->bhq", pq, z)[..., None] + 1e-6
        o = num / den
        return (lambda x, *d: x.permute(*d))(o, 0, 2, 1, 3).reshape(B, S, D) @ wo

    def _B_ref(x, w1, b1, w2, b2):
        h = torch.einsum("bsd,df->bsf", x, w1) + b1
        h = _gelu(h)
        return torch.einsum("bsf,fd->bsd", h, w2) + b2

    x = A_x
    g = _sigmoid((x * gate_w).sum(-1, keepdims=True))
    a = _A_ref(x, A_wqkv, A_wo)
    b = _B_ref(x, B_w1, B_b1, B_w2, B_b2)
    return g * a + (1 - g) * b
```

```python
import sys

HEADER = open('gated_mix__linear_attn_block__dense_activation_gelu__prompt.s.ref').read().split('; Override launch')[0]

PQ_OFF  = 0x000000; PQ_SZ  = 128*20*1024
H_OFF   = 0x280000; H_SZ   = 128*54*1024
KVP_OFF = 0x940000; KVP_SZ = 16*8*18*1024
BDN_OFF = 0xB80000; BD_SZ  = 4*18*1024
BDD_OFF = 0xB80000 + 4*18*1024
B_OFF   = 0xC00000; B_SZ   = 128*40*512
G_OFF   = 0xE80000; G_SZ   = 2048*4

L13 = [(0,0),(0,1),(1,0),(1,1),(1,2),(2,1),(2,2),(2,3),(3,2),(3,3),(3,4),(4,3),(4,4)]
def kt_list(nt):
    if nt == 0: return [0]
    if nt == 9: return [4]
    lo = (nt-1) >> 1
    return [lo, lo+1]
def frag_index(kt, nt):
    return 2*nt - 1 + kt - ((nt-1) >> 1)

class Asm:
    def __init__(self):
        self.lines = []
        self.vm = []
    def e(self, s):
        self.lines.append('    ' + s)
    def label(self, s):
        self.lines.append(s + ':')
    def raw(self, s):
        self.lines.append(s)
    def vmem(self, s, tag):
        self.e(s); self.vm.append(tag)
    def wait_vm(self, tag):
        if tag not in self.vm:
            return
        idx = max(i for i, t in enumerate(self.vm) if t == tag)
        n = len(self.vm) - 1 - idx
        assert n <= 63, n
        self.e(f's_waitcnt vmcnt({n})')
        self.vm = self.vm[idx+1:]
    def wait_vm_all(self):
        self.e('s_waitcnt vmcnt(0)'); self.vm = []

def srd(a, d, base_lo, base_hi, off, size):
    if off:
        a.e(f's_add_u32 s{d}, s{base_lo}, {off}')
        a.e(f's_addc_u32 s{d+1}, s{base_hi}, 0')
    else:
        a.e(f's_mov_b32 s{d}, s{base_lo}')
        a.e(f's_mov_b32 s{d+1}, s{base_hi}')
    a.e(f's_mov_b32 s{d+2}, {size}')
    a.e(f's_mov_b32 s{d+3}, 0x00020000')

def kd(name, vgpr, sgpr=102):
    acc = (vgpr + 3)//4*4
    return f'''.section .rodata,"a"
.p2align 6
.amdhsa_kernel {name}
  .amdhsa_next_free_vgpr {vgpr}
  .amdhsa_next_free_sgpr {sgpr}
  .amdhsa_accum_offset {acc}
  .amdhsa_group_segment_fixed_size 0
  .amdhsa_kernarg_size 96
  .amdhsa_user_sgpr_count 2
  .amdhsa_user_sgpr_kernarg_segment_ptr 1
  .amdhsa_system_sgpr_workgroup_id_x 1
.end_amdhsa_kernel
'''

LOG2E = 0x3FB8AA3B
C_GELU1 = None
import struct
def f32bits(x): return struct.unpack('<I', struct.pack('<f', x))[0]
GC1 = f32bits(-2.0*0.7978845608028654*1.4426950408889634)
GC2 = f32bits(-2.0*0.7978845608028654*1.4426950408889634*0.044715)
EPS6 = f32bits(1e-6)

def unpack(a, lo, hi, src):
    a.e(f'v_lshlrev_b32 v{lo}, 16, v{src}')
    a.e(f'v_and_b32 v{hi}, 0xffff0000, v{src}')

def emit_phi(a, tiles, T):
    n = len(tiles)
    t  = lambda k, r: T + k*4 + r
    e_ = lambda k, r: T + 4*n + k*4 + r
    p_ = lambda k, r: T + 8*n + k*4 + r
    for k, (ac, d) in enumerate(tiles):
        a.e(f'v_cvt_pk_bf16_f32 v{d}, v{ac}, v{ac+1}')
        a.e(f'v_cvt_pk_bf16_f32 v{d+1}, v{ac+2}, v{ac+3}')
    for k, (ac, d) in enumerate(tiles):
        unpack(a, t(k,0), t(k,1), d); unpack(a, t(k,2), t(k,3), d+1)
    for k in range(n):
        for r in range(4):
            a.e(f'v_mul_f32 v{e_(k,r)}, s38, v{t(k,r)}')
    for k in range(n):
        for r in range(4):
            a.e(f'v_exp_f32 v{e_(k,r)}, v{e_(k,r)}')
    for k in range(n):
        for r in range(4):
            a.e(f'v_add_f32 v{p_(k,r)}, 1.0, v{t(k,r)}')
    for k in range(n):
        for r in range(4):
            sp = 40 + (k*4+r)*2
            a.e(f'v_cmp_gt_f32 s[{sp}:{sp+1}], v{t(k,r)}, 0')
    a.e('s_nop 1')
    for k in range(n):
        for r in range(4):
            sp = 40 + (k*4+r)*2
            a.e(f'v_cndmask_b32 v{e_(k,r)}, v{e_(k,r)}, v{p_(k,r)}, s[{sp}:{sp+1}]')
    for k, (ac, d) in enumerate(tiles):
        a.e(f'v_cvt_pk_bf16_f32 v{d}, v{e_(k,0)}, v{e_(k,1)}')
        a.e(f'v_cvt_pk_bf16_f32 v{d+1}, v{e_(k,2)}, v{e_(k,3)}')
    for k, (ac, d) in enumerate(tiles):
        unpack(a, t(k,0), t(k,1), d); unpack(a, t(k,2), t(k,3), d+1)
    for k in range(n):
        for r in range(4):
            a.e(f'v_add_f32 v{t(k,r)}, s39, v{t(k,r)}')
    for k, (ac, d) in enumerate(tiles):
        a.e(f'v_cvt_pk_bf16_f32 v{d}, v{t(k,0)}, v{t(k,1)}')
        a.e(f'v_cvt_pk_bf16_f32 v{d+1}, v{t(k,2)}, v{t(k,3)}')

K1_D = 6
def k1_main(a, U, attn, stride):
    ACC = lambda u, i: 128 + (u*2+i)*4
    XR = lambda c, ks, i: 64 + (c % 4)*16 + (ks*2+i)*4
    RING = lambda n: 32 + (n % 8)*4
    def issue_chunk(c):
        buf = c % 4
        for ks in range(2):
            for i in range(2):
                r = XR(c, ks, i)
                a.vmem(f'buffer_load_dwordx4 v[{r}:{r+3}], v{4+i}, s[12:15], 0 offen offset:{c*128+ks*64}', ('c', c))
        for b in range(8):
            b1, b3, b4 = b & 1, (b >> 1) & 1, (b >> 2) & 1
            ioff = 2*b1 + 8*b3 + 16*b4
            a.e(f's_add_u32 m0, s32, {buf*32768 + ioff*1024}')
            a.e(f's_add_u32 s34, s31, {(c*64 + 2*ioff)*stride}')
            a.vmem(f'buffer_load_dwordx4 v6, s[16:19], s34 offen lds', ('c', c))
    items = [(c, ks, u) for c in range(10) for ks in range(2) for u in range(U)]
    N = len(items)
    def issue_reads(n):
        c, ks, u = items[n]
        buf = c % 4
        areg = (8 if buf < 2 else 16) + (u & 7)
        base = (buf & 1)*32768 + ks*32*512 + (u >> 3)*256
        r = RING(n)
        a.e(f'ds_read_b64_tr_b16 v[{r}:{r+1}], v{areg} offset:{base}')
        a.e(f'ds_read_b64_tr_b16 v[{r+2}:{r+3}], v{areg} offset:{base+4*512}')
    def barrier_for(c):
        a.wait_vm(('c', c))
        a.e('s_barrier')
        if c + 2 <= 9:
            issue_chunk(c+2)
        if c == 9 and not attn:
            for u in range(U):
                a.vmem(f'buffer_load_dwordx2 v[{96+2*u}:{97+2*u}], v7, s[24:27], 0 offen offset:{u*32}', 'b1')
    issue_chunk(0); issue_chunk(1)
    barrier_for(0)
    for n in range(K1_D):
        issue_reads(n)
    for n in range(N):
        c, ks, u = items[n]
        if n + K1_D < N:
            c2, ks2, u2 = items[n+K1_D]
            if ks2 == 0 and u2 == 0:
                barrier_for(c2)
            issue_reads(n+K1_D)
            a.e(f's_waitcnt lgkmcnt({2*K1_D})')
        else:
            a.e(f's_waitcnt lgkmcnt({2*(N-1-n)})')
        r = RING(n)
        first = (c == 0 and ks == 0)
        for i in range(2):
            ac = ACC(u, i); x = XR(c, ks, i)
            cin = '0' if first else f'v[{ac}:{ac+3}]'
            swapped = (not attn) or u < 5
            if swapped:
                a.e(f'v_mfma_f32_16x16x32_bf16 v[{ac}:{ac+3}], v[{r}:{r+3}], v[{x}:{x+3}], {cin}')
            else:
                a.e(f'v_mfma_f32_16x16x32_bf16 v[{ac}:{ac+3}], v[{x}:{x+3}], v[{r}:{r+3}], {cin}')
    a.e('s_nop 7'); a.e('s_nop 1')

def gen_k1():
    a = Asm()
    a.raw('.globl k1_kernel\n.p2align 8\n.type k1_kernel,@function')
    a.label('k1_kernel')
    a.e('s_cmp_ge_u32 s2, 256')
    a.e('s_cbranch_scc1 K1_done')
    a.e('s_load_dwordx2 s[4:5], s[0:1], 0')
    a.e('s_load_dwordx2 s[6:7], s[0:1], 8')
    a.e('s_load_dwordx2 s[8:9], s[0:1], 32')
    a.e('s_load_dwordx2 s[36:37], s[0:1], 40')
    a.e('s_load_dwordx2 s[10:11], s[0:1], 88')
    a.e('s_and_b32 s33, s2, 7')
    a.e('s_lshr_b32 s34, s2, 3')
    a.e('s_lshr_b32 s29, s33, 1')
    a.e('s_lshl_b32 s29, s29, 2')
    a.e('s_and_b32 s35, s34, 3')
    a.e('s_or_b32 s29, s29, s35')
    a.e('s_and_b32 s28, s33, 1')
    a.e('s_lshl_b32 s28, s28, 3')
    a.e('s_lshr_b32 s35, s34, 2')
    a.e('s_or_b32 s28, s28, s35')
    a.e('v_lshrrev_b32 v2, 6, v0')
    a.e('v_and_b32 v1, 63, v0')
    a.e('s_nop 0')
    a.e('v_readfirstlane_b32 s30, v2')
    a.e('s_mov_b32 s38, 0x%x' % LOG2E)
    a.e('s_mov_b32 s39, 0x%x' % EPS6)
    a.e('v_and_b32 v2, 15, v1')
    a.e('v_lshrrev_b32 v3, 4, v1')
    a.e('s_lshl_b32 s33, s28, 7')
    a.e('s_lshl_b32 s34, s30, 5')
    a.e('s_add_u32 s33, s33, s34')
    a.e('v_add_u32 v4, s33, v2')
    a.e('s_movk_i32 s34, 1280')
    a.e('v_mul_lo_u32 v4, v4, s34')
    a.e('v_lshlrev_b32 v5, 4, v3')
    a.e('v_add_u32 v4, v4, v5')
    a.e('v_add_u32 v5, 20480, v4')
    a.e('v_lshrrev_b32 v24, 2, v2')
    a.e('v_and_b32 v25, 3, v2')
    a.e('v_and_b32 v26, 1, v3')
    a.e('v_lshlrev_b32 v26, 2, v26')
    a.e('v_or_b32 v26, v26, v24')
    a.e('v_lshlrev_b32 v27, 3, v3')
    a.e('v_add_u32 v27, v27, v24')
    a.e('v_lshlrev_b32 v27, 9, v27')
    a.e('v_lshlrev_b32 v25, 3, v25')
    a.e('v_add_u32 v27, v27, v25')
    for ul in range(8):
        a.e(f'v_xor_b32 v28, {ul}, v26')
        a.e(f'v_lshlrev_b32 v28, 5, v28')
        a.e(f'v_add_u32 v{8+ul}, v27, v28')
        a.e(f'v_add_u32 v{16+ul}, 0x10000, v{8+ul}')
    a.e('v_lshrrev_b32 v24, 5, v1')
    a.e('v_and_b32 v25, 31, v1')
    a.e('v_lshrrev_b32 v26, 1, v25')
    a.e('v_and_b32 v25, 1, v25')
    a.e('s_and_b32 s33, s30, 1')
    a.e('s_lshr_b32 s34, s30, 1')
    a.e('s_lshl_b32 s35, s33, 1')
    a.e('s_lshl_b32 s3, s34, 2')
    a.e('s_add_u32 s35, s35, s3')
    a.e('v_add_u32 v27, s35, v24')
    a.e('v_xor_b32 v26, v26, v27')
    a.e('s_add_u32 s3, s33, s3')
    a.e('s_lshl_b32 s32, s3, 10')
    a.e('s_lshl_b32 s3, s3, 1')
    a.e('s_waitcnt lgkmcnt(0)')
    srd(a, 12, 4, 5, 0, 2048*1280)
    a.e('s_cmp_lt_u32 s29, 8')
    a.e('s_cbranch_scc0 K1_ffn')
    srd(a, 16, 6, 7, 0, 640*3840)
    srd(a, 20, 10, 11, PQ_OFF, PQ_SZ)
    srd(a, 24, 10, 11, KVP_OFF, KVP_SZ)
    a.e('s_mul_i32 s31, s3, 3840')
    a.e('v_cmp_gt_u32 vcc, 15, v26')
    a.e('s_nop 1')
    a.e('v_cndmask_b32 v26, 0, v26, vcc')
    a.e('v_mul_u32_u24 v28, 52, v26')
    a.e('v_lshrrev_b32 v28, 8, v28')
    a.e('v_mul_u32_u24 v29, 5, v28')
    a.e('v_sub_u32 v29, v26, v29')
    a.e('v_mul_u32_u24 v28, 1280, v28')
    a.e('v_lshlrev_b32 v29, 5, v29')
    a.e('v_add_u32 v6, v28, v29')
    a.e('s_mul_i32 s33, s29, 160')
    a.e('v_add_u32 v6, s33, v6')
    a.e('v_mul_u32_u24 v28, 3840, v24')
    a.e('v_add_u32 v6, v6, v28')
    a.e('v_lshlrev_b32 v28, 4, v25')
    a.e('v_add_u32 v6, v6, v28')
    k1_main(a, 15, True, 3840)
    ACC = lambda u, i: 128 + (u*2+i)*4
    a.e('s_lshl_b32 s33, s28, 3')
    a.e('s_lshl_b32 s34, s30, 1')
    a.e('s_add_u32 s33, s33, s34')
    a.e('s_mul_i32 s33, s33, 20480')
    a.e('v_lshlrev_b32 v2, 4, v1')
    a.e('v_add_u32 v2, s33, v2')
    a.e('s_mul_i32 s35, s29, 5')
    for i in range(2):
        tiles = [(ACC(u, i), 68 + 2*u) for u in range(5)]
        emit_phi(a, tiles, 8)
        for u in range(5):
            a.e(f's_add_u32 s33, s35, {u}')
            a.e('s_lshr_b32 s34, s33, 1')
            a.e('s_lshl_b32 s34, s34, 10')
            a.e('s_and_b32 s33, s33, 1')
            a.e('s_lshl_b32 s33, s33, 3')
            a.e('s_add_u32 s34, s34, s33')
            a.e(f's_add_u32 s34, s34, {i*20480}')
            a.vmem(f'buffer_store_dwordx2 v[{68+2*u}:{69+2*u}], v2, s[20:23], s34 offen', 'st')
        a.e('s_nop 1')
    for i in range(2):
        tiles = [(ACC(5+u, i), 80 + 4*u + 2*i) for u in range(5)]
        emit_phi(a, tiles, 8)
    for u in range(5):
        for i in range(2):
            ac = ACC(10+u, i); d = 100 + 4*u + 2*i
            a.e(f'v_cvt_pk_bf16_f32 v{d}, v{ac}, v{ac+1}')
            a.e(f'v_cvt_pk_bf16_f32 v{d+1}, v{ac+2}, v{ac+3}')
    for r in range(4):
        a.e(f'v_mov_b32 v{120+r}, 0x3f803f80')
    a.e('s_nop 1')
    for t, (aa, bb) in enumerate(L13):
        a.e(f'v_mfma_f32_16x16x32_bf16 v[{128+4*t}:{131+4*t}], v[{80+4*aa}:{83+4*aa}], v[{100+4*bb}:{103+4*bb}], 0')
    for aa in range(5):
        t = 13 + aa
        a.e(f'v_mfma_f32_16x16x32_bf16 v[{128+4*t}:{131+4*t}], v[{80+4*aa}:{83+4*aa}], v[120:123], 0')
    a.e('s_nop 7'); a.e('s_nop 1')
    a.e('s_barrier')
    a.e('s_mul_i32 s33, s30, 18432')
    a.e('v_lshlrev_b32 v2, 4, v1')
    a.e('v_add_u32 v3, s33, v2')
    for t in range(18):
        a.e(f'ds_write_b128 v3, v[{128+4*t}:{131+4*t}] offset:{t*1024}')
    a.e('s_waitcnt lgkmcnt(0)')
    a.e('s_barrier')
    a.e('s_lshl_b32 s33, s30, 10')
    a.e('v_add_u32 v3, s33, v2')
    a.e('v_add_u32 v4, 55296, v3')
    a.e('s_lshl_b32 s33, s28, 3')
    a.e('s_add_u32 s33, s33, s29')
    a.e('s_mul_i32 s33, s33, 18432')
    for j in range(5):
        if j == 4:
            a.e('s_cmp_ge_u32 s30, 2')
            a.e('s_cbranch_scc1 K1_done')
        for r in range(4):
            if r < 3:
                a.e(f'ds_read_b128 v[{8+4*r}:{11+4*r}], v3 offset:{r*18432 + j*4096}')
            else:
                a.e(f'ds_read_b128 v[{8+4*r}:{11+4*r}], v4 offset:{j*4096}')
        a.e('s_waitcnt lgkmcnt(0)')
        a.e('v_pk_add_f32 v[8:9], v[8:9], v[12:13]')
        a.e('v_pk_add_f32 v[10:11], v[10:11], v[14:15]')
        a.e('v_pk_add_f32 v[16:17], v[16:17], v[20:21]')
        a.e('v_pk_add_f32 v[18:19], v[18:19], v[22:23]')
        a.e(f'v_pk_add_f32 v[{24+4*j}:{25+4*j}], v[8:9], v[16:17]')
        a.e(f'v_pk_add_f32 v[{26+4*j}:{27+4*j}], v[10:11], v[18:19]')
        a.e(f'buffer_store_dwordx4 v[{24+4*j}:{27+4*j}], v3, s[24:27], s33 offen offset:{j*4096 if j < 1 else 0}' if j == 0 else
            f'buffer_store_dwordx4 v[{24+4*j}:{27+4*j}], v3, s[24:27], s33 offen')
        a.e('s_add_u32 s33, s33, 4096')
    a.e('s_branch K1_done')
    a.label('K1_ffn')
    a.vm = []
    srd(a, 16, 8, 9, 0, 640*3456)
    srd(a, 20, 10, 11, H_OFF, H_SZ)
    srd(a, 24, 36, 37, 0, 1728*2)
    a.e('s_mul_i32 s31, s3, 3456')
    a.e('s_sub_u32 s33, s29, 8')
    a.e('s_mul_i32 s35, s33, 14')
    a.e('s_cmp_eq_u32 s33, 7')
    a.e('s_cselect_b32 s35, 96, s35')
    a.e('s_cmp_lt_u32 s33, 6')
    a.e('s_cselect_b32 s3, 14, 12')
    a.e('v_cmp_gt_u32 vcc, s3, v26')
    a.e('s_nop 1')
    a.e('v_cndmask_b32 v26, 0, v26, vcc')
    a.e('v_add_u32 v26, s35, v26')
    a.e('v_lshlrev_b32 v6, 5, v26')
    a.e('v_mul_u32_u24 v28, 3456, v24')
    a.e('v_add_u32 v6, v6, v28')
    a.e('v_lshlrev_b32 v28, 4, v25')
    a.e('v_add_u32 v6, v6, v28')
    a.e('v_lshlrev_b32 v7, 3, v3')
    a.e('s_lshl_b32 s33, s35, 5')
    a.e('v_add_u32 v7, s33, v7')
    k1_main(a, 14, False, 3456)
    a.wait_vm('b1')
    a.e('s_lshl_b32 s33, s28, 3')
    a.e('s_lshl_b32 s34, s30, 1')
    a.e('s_add_u32 s33, s33, s34')
    a.e('s_mul_i32 s33, s33, 54')
    a.e('s_lshr_b32 s34, s35, 1')
    a.e('s_add_u32 s33, s33, s34')
    a.e('s_lshl_b32 s33, s33, 10')
    a.e('v_lshlrev_b32 v2, 4, v1')
    a.e('v_add_u32 v2, s33, v2')
    a.e('v_add_u32 v3, 55296, v2')
    a.e('s_mov_b32 s40, 0x%x' % GC2); a.e('s_mov_b32 s41, 0x%x' % GC2)
    a.e('v_mov_b32 v4, 0x%x' % GC1); a.e('v_mov_b32 v5, 0x%x' % GC1)
    for m in range(7):
        if m == 6:
            a.e('s_cmp_eq_u32 s3, 12')
            a.e('s_cbranch_scc1 K1_done')
        tl = [(2*m + h, i) for i in range(2) for h in range(2)]
        for h in range(2):
            u = 2*m + h
            unpack(a, 8+4*h, 9+4*h, 96+2*u); unpack(a, 10+4*h, 11+4*h, 97+2*u)
        Hh = lambda k: 16 + 4*k
        Tt = lambda k: 32 + 4*k
        P  = lambda k: 48 + 2*k
        for k, (u, i) in enumerate(tl):
            ac = ACC(u, i)
            a.e(f'v_cvt_pk_bf16_f32 v{P(k)}, v{ac}, v{ac+1}')
            a.e(f'v_cvt_pk_bf16_f32 v{P(k)+1}, v{ac+2}, v{ac+3}')
        for k in range(4):
            unpack(a, Hh(k), Hh(k)+1, P(k)); unpack(a, Hh(k)+2, Hh(k)+3, P(k)+1)
        for k, (u, i) in enumerate(tl):
            b = 8 + 4*(u & 1)
            a.e(f'v_pk_add_f32 v[{Hh(k)}:{Hh(k)+1}], v[{Hh(k)}:{Hh(k)+1}], v[{b}:{b+1}]')
            a.e(f'v_pk_add_f32 v[{Hh(k)+2}:{Hh(k)+3}], v[{Hh(k)+2}:{Hh(k)+3}], v[{b+2}:{b+3}]')
        for k in range(4):
            a.e(f'v_cvt_pk_bf16_f32 v{P(k)}, v{Hh(k)}, v{Hh(k)+1}')
            a.e(f'v_cvt_pk_bf16_f32 v{P(k)+1}, v{Hh(k)+2}, v{Hh(k)+3}')
        for k in range(4):
            unpack(a, Hh(k), Hh(k)+1, P(k)); unpack(a, Hh(k)+2, Hh(k)+3, P(k)+1)
        for k in range(4):
            for q in (0, 2):
                a.e(f'v_pk_mul_f32 v[{Tt(k)+q}:{Tt(k)+q+1}], v[{Hh(k)+q}:{Hh(k)+q+1}], v[{Hh(k)+q}:{Hh(k)+q+1}]')
        for k in range(4):
            for q in (0, 2):
                a.e(f'v_pk_fma_f32 v[{Tt(k)+q}:{Tt(k)+q+1}], v[{Tt(k)+q}:{Tt(k)+q+1}], s[40:41], v[4:5]')
        for k in range(4):
            for q in (0, 2):
                a.e(f'v_pk_mul_f32 v[{Tt(k)+q}:{Tt(k)+q+1}], v[{Tt(k)+q}:{Tt(k)+q+1}], v[{Hh(k)+q}:{Hh(k)+q+1}]')
        for k in range(4):
            for q in range(4):
                a.e(f'v_exp_f32 v{Tt(k)+q}, v{Tt(k)+q}')
        for k in range(4):
            for q in range(4):
                a.e(f'v_add_f32 v{Tt(k)+q}, 1.0, v{Tt(k)+q}')
        for k in range(4):
            for q in range(4):
                a.e(f'v_rcp_f32 v{Tt(k)+q}, v{Tt(k)+q}')
        for k in range(4):
            for q in (0, 2):
                a.e(f'v_pk_mul_f32 v[{Tt(k)+q}:{Tt(k)+q+1}], v[{Tt(k)+q}:{Tt(k)+q+1}], v[{Hh(k)+q}:{Hh(k)+q+1}]')
        ob = 56 + 8*(m & 1)
        for k, (u, i) in enumerate(tl):
            d = ob + 4*i + 2*(u & 1)
            a.e(f'v_cvt_pk_bf16_f32 v{d}, v{Tt(k)}, v{Tt(k)+1}')
            a.e(f'v_cvt_pk_bf16_f32 v{d+1}, v{Tt(k)+2}, v{Tt(k)+3}')
        for i in range(2):
            a.e(f'buffer_store_dwordx4 v[{ob+4*i}:{ob+4*i+3}], v{2+i}, s[20:23], 0 offen offset:{m*1024}' if m < 4 else
                f'buffer_store_dwordx4 v[{ob+4*i}:{ob+4*i+3}], v{2+i}, s[20:23], s42 offen offset:{(m-4)*1024}')
        if m == 3:
            a.e('s_movk_i32 s42, 4096')
    a.label('K1_done')
    a.e('s_endpgm')
    return a

NRED = 26; ZWG = 26; GATE0 = 27; GEMM0 = 59; K2_GRID = GEMM0 + 256
def tile_decode(a, src):
    a.e(f's_and_b32 s33, s{src}, 7')
    a.e(f's_lshr_b32 s34, s{src}, 3')
    a.e('s_and_b32 s29, s33, 1')
    a.e('s_lshl_b32 s29, s29, 2')
    a.e('s_and_b32 s35, s34, 3')
    a.e('s_or_b32 s29, s29, s35')
    a.e('s_lshr_b32 s28, s33, 1')
    a.e('s_lshl_b32 s28, s28, 3')
    a.e('s_lshr_b32 s35, s34, 2')
    a.e('s_or_b32 s28, s28, s35')

def dma_voffsets(a, base_reg0, tmp):
    for q in range(5):
        a.e(f'v_add_u32 v{tmp}, {64*q}, v1')
        a.e(f'v_mul_u32_u24 v{tmp+1}, 6554, v{tmp}')
        a.e(f'v_lshrrev_b32 v{tmp+1}, 16, v{tmp+1}')
        a.e(f'v_mul_u32_u24 v{tmp+2}, 10, v{tmp+1}')
        a.e(f'v_sub_u32 v{tmp+2}, v{tmp}, v{tmp+2}')
        a.e(f'v_mul_u32_u24 v{tmp+1}, 1280, v{tmp+1}')
        a.e(f'v_lshlrev_b32 v{tmp+2}, 4, v{tmp+2}')
        a.e(f'v_add_u32 v{base_reg0+q}, v{tmp+1}, v{tmp+2}')

def final_reduce(a, ACCB, region):
    a.e('s_nop 7'); a.e('s_nop 1')
    a.e(f's_mul_i32 s33, s30, {region}')
    a.e('v_lshlrev_b32 v2, 4, v1')
    a.e('v_add_u32 v3, s33, v2')
    for t in range(20):
        a.e(f'ds_write_b128 v3, v[{ACCB+4*t}:{ACCB+4*t+3}] offset:{t*1024}')
    a.e('s_waitcnt lgkmcnt(0)')
    a.e('s_barrier')
    a.e('s_mul_i32 s33, s30, 5120')
    a.e('v_add_u32 v3, s33, v2')
    for half in range(2):
        for r in (2*half, 2*half+1):
            for nt in range(5):
                d = 32 + (r*5+nt)*4
                off = r*region + nt*1024
                if off > 65535:
                    a.e(f'v_add_u32 v4, {r*region}, v3')
                    a.e(f'ds_read_b128 v[{d}:{d+3}], v4 offset:{nt*1024}')
                else:
                    a.e(f'ds_read_b128 v[{d}:{d+3}], v3 offset:{off}')
        a.e('s_waitcnt lgkmcnt(0)')
    for nt in range(5):
        r0 = 32 + nt*4; r1 = 32 + (5+nt)*4; r2 = 32 + (10+nt)*4; r3 = 32 + (15+nt)*4
        for q in (0, 2):
            a.e(f'v_pk_add_f32 v[{r0+q}:{r0+q+1}], v[{r0+q}:{r0+q+1}], v[{r1+q}:{r1+q+1}]')
            a.e(f'v_pk_add_f32 v[{r2+q}:{r2+q+1}], v[{r2+q}:{r2+q+1}], v[{r3+q}:{r3+q+1}]')
    for nt in range(5):
        r0 = 32 + nt*4; r2 = 32 + (10+nt)*4
        for q in (0, 2):
            a.e(f'v_pk_add_f32 v[{8+4*nt+q}:{8+4*nt+q+1}], v[{r0+q}:{r0+q+1}], v[{r2+q}:{r2+q+1}]')

def gen_k2():
    a = Asm()
    a.raw('.globl k2_kernel\n.p2align 8\n.type k2_kernel,@function')
    a.label('k2_kernel')
    a.e(f's_cmp_ge_u32 s2, {K2_GRID}')
    a.e('s_cbranch_scc1 K2_done')
    a.e('s_load_dwordx2 s[4:5], s[0:1], 0')
    a.e('s_load_dwordx2 s[6:7], s[0:1], 48')
    a.e('s_load_dwordx2 s[8:9], s[0:1], 56')
    a.e('s_load_dwordx2 s[36:37], s[0:1], 64')
    a.e('s_load_dwordx2 s[10:11], s[0:1], 88')
    a.e('v_lshrrev_b32 v2, 6, v0')
    a.e('v_and_b32 v1, 63, v0')
    a.e('s_nop 0')
    a.e('v_readfirstlane_b32 s30, v2')
    a.e('s_mov_b32 s38, 0x%x' % LOG2E)
    a.e('s_waitcnt lgkmcnt(0)')
    a.e(f's_cmp_ge_u32 s2, {GEMM0}')
    a.e('s_cbranch_scc1 K2_gemm')
    a.e(f's_cmp_ge_u32 s2, {GATE0}')
    a.e('s_cbranch_scc1 K2_gate')
    a.e(f's_cmp_eq_u32 s2, {ZWG}')
    a.e('s_cbranch_scc1 K2_zero')
    srd(a, 12, 10, 11, KVP_OFF, KVP_SZ)
    srd(a, 16, 10, 11, BDN_OFF, 2*BD_SZ)
    a.e('s_lshl_b32 s3, s2, 2')
    a.e('s_add_u32 s3, s3, s30')
    a.e('s_mul_i32 s20, s3, 5042')
    a.e('s_lshr_b32 s20, s20, 16')
    a.e('s_mul_i32 s21, s20, 13')
    a.e('s_sub_u32 s21, s3, s21')
    al = sum(v[0] << (4*i) for i, v in enumerate(L13)); bl = sum(v[1] << (4*i) for i, v in enumerate(L13))
    a.e('s_lshl_b32 s22, s21, 2')
    a.e(f's_mov_b32 s24, 0x{al & 0xffffffff:x}'); a.e(f's_mov_b32 s25, 0x{al >> 32:x}')
    a.e('s_lshr_b64 s[24:25], s[24:25], s22')
    a.e('s_and_b32 s23, s24, 15')
    a.e(f's_mov_b32 s24, 0x{bl & 0xffffffff:x}'); a.e(f's_mov_b32 s25, 0x{bl >> 32:x}')
    a.e('s_lshr_b64 s[24:25], s[24:25], s22')
    a.e('s_and_b32 s22, s24, 15')
    a.e('s_mul_i32 s24, s20, 18')
    a.e('s_add_u32 s25, s24, s21')
    a.e('s_lshl_b32 s25, s25, 10')
    a.e('s_add_u32 s26, s24, s23')
    a.e('s_add_u32 s26, s26, 13')
    a.e('s_lshl_b32 s26, s26, 10')
    a.e('v_lshlrev_b32 v2, 4, v1')
    a.e('v_add_u32 v3, s25, v2')
    a.e('v_add_u32 v4, s26, v2')
    a.e('s_mov_b32 s27, 0')
    for rb in range(16):
        a.e(f'buffer_load_dwordx4 v[{32+4*rb}:{35+4*rb}], v3, s[12:15], s27 offen')
        a.e(f'buffer_load_dwordx4 v[{96+4*rb}:{99+4*rb}], v4, s[12:15], s27 offen')
        a.e('s_add_u32 s27, s27, 147456')
    a.e('v_lshrrev_b32 v5, 4, v1')
    a.e('v_lshlrev_b32 v5, 2, v5')
    a.e('s_lshl_b32 s24, s23, 4')
    a.e('v_add_u32 v5, s24, v5')
    a.e('v_and_b32 v6, 15, v1')
    a.e('s_lshl_b32 s24, s22, 4')
    a.e('v_add_u32 v6, s24, v6')
    a.e('v_mul_u32_u24 v5, 205, v5')
    a.e('v_lshrrev_b32 v5, 12, v5')
    a.e('v_mul_u32_u24 v6, 205, v6')
    a.e('v_lshrrev_b32 v6, 12, v6')
    a.e('v_cmp_eq_u32 s[40:41], v5, v6')
    a.e('s_lshr_b32 s24, s20, 1')
    a.e('s_and_b32 s25, s20, 1')
    a.e('s_mul_i32 s25, s25, 5')
    a.e('s_add_u32 s26, s25, s23')
    a.e('s_add_u32 s27, s25, s22')
    a.e('s_lshr_b32 s31, s26, 1')
    a.e('s_and_b32 s26, s26, 1')
    a.e('s_sub_u32 s32, s27, 1')
    a.e('s_ashr_i32 s32, s32, 1')
    a.e('s_lshl_b32 s33, s27, 1')
    a.e('s_sub_u32 s33, s33, 1')
    a.e('s_add_u32 s33, s33, s31')
    a.e('s_sub_u32 s33, s33, s32')
    a.e('s_mul_i32 s24, s24, 18')
    a.e('s_add_u32 s33, s33, s24')
    a.e('s_lshl_b32 s33, s33, 10')
    a.e('s_lshl_b32 s26, s26, 3')
    a.e('s_add_u32 s33, s33, s26')
    a.e('v_add_u32 v7, s33, v2')
    a.e('s_waitcnt vmcnt(0)')
    for base in (32, 96):
        st = 8
        while st >= 1:
            for k in range(st):
                for q in (0, 2):
                    x0 = base + 4*k + q; x1 = base + 4*(k+st) + q
                    a.e(f'v_pk_add_f32 v[{x0}:{x0+1}], v[{x0}:{x0+1}], v[{x1}:{x1+1}]')
            st //= 2
    a.e('s_nop 1')
    a.e('v_cvt_pk_bf16_f32 v8, v32, v33'); a.e('v_cvt_pk_bf16_f32 v9, v34, v35')
    a.e('v_cvt_pk_bf16_f32 v10, v96, v97'); a.e('v_cvt_pk_bf16_f32 v11, v98, v99')
    a.e('s_nop 1')
    for r in range(8, 12):
        a.e(f'v_cndmask_b32 v{r}, 0, v{r}, s[40:41]')
    a.e('buffer_store_dwordx2 v[8:9], v7, s[16:19], 0 offen')
    a.e(f's_mov_b32 s33, {BD_SZ}')
    a.e('buffer_store_dwordx2 v[10:11], v7, s[16:19], s33 offen')
    a.e('s_branch K2_done')
    a.label('K2_zero')
    srd(a, 16, 10, 11, BDN_OFF, 2*BD_SZ)
    nz = set()
    for jp in range(2):
        for (aa, bb) in L13:
            A = 5*jp + aa; nt = 5*jp + bb
            nz.add((frag_index(A >> 1, nt), A & 1))
    zl = [(fi, h) for fi in range(18) for h in range(2) if (fi, h) not in nz]
    assert len(zl) == 10
    a.e('v_lshlrev_b32 v2, 4, v1')
    a.e('s_mul_i32 s33, s30, 18432')
    a.e('v_add_u32 v2, s33, v2')
    a.e('v_mov_b32 v8, 0'); a.e('v_mov_b32 v9, 0')
    a.e(f's_mov_b32 s33, {BD_SZ}')
    for fi, h in zl:
        a.e(f'v_add_u32 v3, {fi*1024 + h*8}, v2')
        a.e('buffer_store_dwordx2 v[8:9], v3, s[16:19], 0 offen')
        a.e('buffer_store_dwordx2 v[8:9], v3, s[16:19], s33 offen')
    a.e('s_branch K2_done')
    a.label('K2_gate')
    srd(a, 12, 4, 5, 0, 2048*1280)
    srd(a, 16, 36, 37, 0, 1280)
    srd(a, 20, 10, 11, G_OFF, G_SZ)
    a.e(f's_sub_u32 s3, s2, {GATE0}')
    a.e('s_lshl_b32 s3, s3, 6')
    a.e('s_lshl_b32 s33, s30, 4')
    a.e('s_add_u32 s3, s3, s33')
    a.e('v_and_b32 v2, 15, v1')
    a.e('v_lshrrev_b32 v3, 4, v1')
    a.e('v_add_u32 v4, s3, v2')
    a.e('v_lshlrev_b32 v7, 2, v4')
    a.e('v_mul_u32_u24 v4, 1280, v4')
    a.e('v_lshlrev_b32 v3, 4, v3')
    a.e('v_add_u32 v4, v4, v3')
    for j in range(20):
        a.e(f'buffer_load_dwordx4 v[{16+4*j}:{19+4*j}], v4, s[12:15], 0 offen offset:{64*j}')
        a.e(f'buffer_load_dwordx4 v[{96+4*j}:{99+4*j}], v3, s[16:19], 0 offen offset:{64*j}')
    a.e('v_mov_b32 v8, 0'); a.e('v_mov_b32 v9, 0')
    a.e('s_waitcnt vmcnt(0)')
    for j in range(20):
        for q in range(4):
            x = 16+4*j+q; w = 96+4*j+q
            unpack(a, 176+4*q, 177+4*q, x); unpack(a, 178+4*q, 179+4*q, w)
        for q in range(4):
            a.e(f'v_pk_mul_f32 v[{176+4*q}:{177+4*q}], v[{176+4*q}:{177+4*q}], v[{178+4*q}:{179+4*q}]')
        for q in range(4):
            a.e(f'v_cvt_pk_bf16_f32 v{178+4*q}, v{176+4*q}, v{177+4*q}')
        for q in range(4):
            unpack(a, 176+4*q, 177+4*q, 178+4*q)
        for q in range(4):
            a.e(f'v_pk_add_f32 v[8:9], v[8:9], v[{176+4*q}:{177+4*q}]')
    a.e('v_add_f32 v8, v8, v9')
    a.e('v_xor_b32 v10, 16, v1'); a.e('v_lshlrev_b32 v10, 2, v10')
    a.e('v_xor_b32 v11, 32, v1'); a.e('v_lshlrev_b32 v11, 2, v11')
    a.e('ds_bpermute_b32 v9, v10, v8')
    a.e('s_waitcnt lgkmcnt(0)')
    a.e('v_add_f32 v8, v8, v9')
    a.e('ds_bpermute_b32 v9, v11, v8')
    a.e('s_waitcnt lgkmcnt(0)')
    a.e('v_add_f32 v8, v8, v9')
    a.e('v_cvt_pk_bf16_f32 v8, v8, v8')
    a.e('v_lshlrev_b32 v8, 16, v8')
    a.e('v_mul_f32 v8, s38, v8')
    a.e('v_sub_f32 v8, 0, v8')
    a.e('v_exp_f32 v8, v8')
    a.e('s_nop 0')
    a.e('v_add_f32 v8, 1.0, v8')
    a.e('v_rcp_f32 v8, v8')
    a.e('s_nop 0')
    a.e('v_cvt_pk_bf16_f32 v8, v8, v8')
    a.e('v_lshlrev_b32 v8, 16, v8')
    a.e('buffer_store_dword v8, v7, s[20:23], 0 offen')
    a.e('s_branch K2_done')
    a.label('K2_gemm')
    a.vm = []
    srd(a, 12, 10, 11, H_OFF, H_SZ)
    srd(a, 16, 6, 7, 0, 1728*1280)
    srd(a, 20, 10, 11, B_OFF, B_SZ)
    srd(a, 24, 8, 9, 0, 1280)
    a.e(f's_sub_u32 s3, s2, {GEMM0}')
    tile_decode(a, 3)
    a.e('s_mul_i32 s31, s30, 14')
    a.e('s_cmp_eq_u32 s30, 3')
    a.e('s_cselect_b32 s31, 41, s31')
    a.e('v_lshlrev_b32 v2, 4, v1')
    a.e('s_lshl_b32 s33, s28, 2')
    a.e('s_mul_i32 s33, s33, 54')
    a.e('s_add_u32 s33, s33, s31')
    a.e('s_lshl_b32 s33, s33, 10')
    a.e('v_add_u32 v4, s33, v2')
    for i in range(1, 4):
        a.e(f'v_add_u32 v{4+i}, {i*55296}, v4')
    dma_voffsets(a, 8, 16)
    a.e('s_mul_i32 s33, s31, 40960')
    a.e('s_mul_i32 s34, s29, 160')
    a.e('s_add_u32 s33, s33, s34')
    for q in range(5):
        a.e(f'v_add_u32 v{8+q}, s33, v{8+q}')
    a.e('s_mul_i32 s32, s30, 20480')
    a.e('v_lshrrev_b32 v16, 4, v1')
    a.e('v_and_b32 v17, 15, v1')
    a.e('v_lshrrev_b32 v18, 2, v17')
    a.e('v_and_b32 v17, 3, v17')
    a.e('v_lshlrev_b32 v19, 2, v16')
    a.e('v_add_u32 v19, v19, v18')
    a.e('v_mul_u32_u24 v19, 160, v19')
    a.e('v_lshlrev_b32 v17, 3, v17')
    a.e('v_add_u32 v19, v19, v17')
    a.e('v_add_u32 v13, s32, v19')
    a.e('v_lshlrev_b32 v14, 3, v16')
    a.e('v_add_u32 v14, s34, v14')
    HS = lambda j, i: 64 + (j % 4)*16 + 4*i
    WB = lambda j, nt: 24 + (j & 1)*20 + 4*nt
    ACC = lambda i, nt: 128 + (i*5+nt)*4
    def issue(j):
        a.e(f's_mov_b32 s34, {j*1024}')
        for i in range(4):
            a.vmem(f'buffer_load_dwordx4 v[{HS(j,i)}:{HS(j,i)+3}], v{4+i}, s[12:15], s34 offen', ('s', j))
        a.e(f's_mov_b32 s35, {j*40960}')
        for q in range(5):
            a.e(f's_add_u32 m0, s32, {(j % 4)*5120 + q*1024}')
            a.e('s_nop 0')
            a.vmem(f'buffer_load_dwordx4 v{8+q}, s[16:19], s35 offen lds', ('s', j))
    def reads(j):
        for nt in range(5):
            r = WB(j, nt); off = (j % 4)*5120 + nt*32
            a.e(f'ds_read_b64_tr_b16 v[{r}:{r+1}], v13 offset:{off}')
            a.e(f'ds_read_b64_tr_b16 v[{r+2}:{r+3}], v13 offset:{off+2560}')
    for j in range(4):
        issue(j)
    a.wait_vm(('s', 0))
    reads(0)
    for j in range(14):
        if j + 1 <= 13:
            a.wait_vm(('s', j+1))
            reads(j+1)
            a.e('s_waitcnt lgkmcnt(10)')
        else:
            a.e('s_waitcnt lgkmcnt(0)')
            a.e('s_cmp_ge_u32 s30, 2')
            a.e('s_cbranch_scc1 K2_skip')
        for nt in range(5):
            for i in range(4):
                ac = ACC(i, nt); w = WB(j, nt); h = HS(j, i)
                cin = '0' if j == 0 else f'v[{ac}:{ac+3}]'
                a.e(f'v_mfma_f32_16x16x32_bf16 v[{ac}:{ac+3}], v[{w}:{w+3}], v[{h}:{h+3}], {cin}')
        if j + 4 <= 13:
            issue(j+4)
    a.label('K2_skip')
    for nt in range(5):
        a.e(f'buffer_load_dwordx2 v[{112+2*nt}:{113+2*nt}], v14, s[24:27], 0 offen offset:{nt*32}')
    final_reduce(a, 128, 20480)
    a.e('s_waitcnt vmcnt(0)')
    for nt in range(5):
        a.e(f'v_cvt_pk_bf16_f32 v{32+2*nt}, v{8+4*nt}, v{9+4*nt}')
        a.e(f'v_cvt_pk_bf16_f32 v{33+2*nt}, v{10+4*nt}, v{11+4*nt}')
    for nt in range(5):
        unpack(a, 8+4*nt, 9+4*nt, 32+2*nt); unpack(a, 10+4*nt, 11+4*nt, 33+2*nt)
        unpack(a, 44+4*nt, 45+4*nt, 112+2*nt); unpack(a, 46+4*nt, 47+4*nt, 113+2*nt)
    for nt in range(5):
        for q in (0, 2):
            a.e(f'v_pk_add_f32 v[{8+4*nt+q}:{9+4*nt+q}], v[{8+4*nt+q}:{9+4*nt+q}], v[{44+4*nt+q}:{45+4*nt+q}]')
    for nt in range(5):
        a.e(f'v_cvt_pk_bf16_f32 v{32+2*nt}, v{8+4*nt}, v{9+4*nt}')
        a.e(f'v_cvt_pk_bf16_f32 v{33+2*nt}, v{10+4*nt}, v{11+4*nt}')
    a.e('s_lshl_b32 s33, s28, 2')
    a.e('s_add_u32 s33, s33, s30')
    a.e('s_mul_i32 s33, s33, 40')
    a.e('s_mul_i32 s34, s29, 5')
    a.e('s_add_u32 s33, s33, s34')
    a.e('s_lshl_b32 s33, s33, 9')
    a.e('v_lshlrev_b32 v2, 3, v1')
    a.e('v_add_u32 v2, s33, v2')
    for nt in range(5):
        a.e(f'buffer_store_dwordx2 v[{32+2*nt}:{33+2*nt}], v2, s[20:23], 0 offen offset:{nt*512}')
    a.label('K2_done')
    a.e('s_endpgm')
    return a

def gen_k3():
    a = Asm()
    a.raw('.globl k3_kernel\n.p2align 8\n.type k3_kernel,@function')
    a.label('k3_kernel')
    a.e('s_cmp_ge_u32 s2, 256')
    a.e('s_cbranch_scc1 K3_done')
    a.e('s_load_dwordx2 s[6:7], s[0:1], 16')
    a.e('s_load_dwordx2 s[8:9], s[0:1], 72')
    a.e('s_load_dwordx2 s[10:11], s[0:1], 88')
    a.e('v_lshrrev_b32 v2, 6, v0')
    a.e('v_and_b32 v1, 63, v0')
    a.e('s_nop 0')
    a.e('v_readfirstlane_b32 s30, v2')
    a.e('s_mov_b32 s39, 0x%x' % EPS6)
    tile_decode(a, 2)
    a.e('s_waitcnt lgkmcnt(0)')
    srd(a, 12, 10, 11, PQ_OFF, PQ_SZ)
    srd(a, 16, 6, 7, 0, 640*1280)
    srd(a, 20, 10, 11, BDN_OFF, 2*BD_SZ)
    srd(a, 24, 10, 11, B_OFF, B_SZ)
    srd(a, 44, 10, 11, G_OFF, G_SZ)
    srd(a, 48, 8, 9, 0, 2048*1280)
    a.e('v_lshlrev_b32 v2, 4, v1')
    a.e('s_mul_i32 s33, s28, 80')
    a.e('s_mul_i32 s34, s30, 5')
    a.e('s_add_u32 s33, s33, s34')
    a.e('s_lshl_b32 s33, s33, 10')
    a.e('v_add_u32 v4, s33, v2')
    for i in range(1, 4):
        a.e(f'v_add_u32 v{4+i}, {i*20480}, v4')
    a.e('s_mul_i32 s33, s30, 18432')
    a.e('v_add_u32 v3, s33, v2')
    a.e('s_movk_i32 s40, 4096')
    PQ = lambda i, m: 144 + (i*5 + m)*4
    BDR = lambda bank, k: 80 + bank*32 + 4*k
    def bd_frags(m):
        return [(kt, nt) for nt in (2*m, 2*m+1) for kt in kt_list(nt)]
    def issue_bd(m):
        fr = bd_frags(m)
        for k, (kt, nt) in enumerate(fr):
            fi = frag_index(kt, nt)
            a.e(f's_mov_b32 s34, {fi*1024}')
            a.e(f's_mov_b32 s35, {fi*1024 + BD_SZ}')
            a.vmem(f'buffer_load_dwordx4 v[{BDR(m&1,k)}:{BDR(m&1,k)+3}], v3, s[20:23], s34 offen', ('bd', m))
            a.vmem(f'buffer_load_dwordx4 v[{BDR(m&1,4+k)}:{BDR(m&1,4+k)+3}], v3, s[20:23], s35 offen', ('bd', m))
    for m in range(5):
        for i in range(4):
            r = PQ(i, m)
            if m < 4:
                a.vmem(f'buffer_load_dwordx4 v[{r}:{r+3}], v{4+i}, s[12:15], 0 offen offset:{m*1024}', 'pq')
            else:
                a.vmem(f'buffer_load_dwordx4 v[{r}:{r+3}], v{4+i}, s[12:15], s40 offen', 'pq')
    issue_bd(0)
    dma_voffsets(a, 8, 16)
    a.e('s_mul_i32 s33, s30, 204800')
    a.e('s_mul_i32 s34, s29, 160')
    a.e('s_add_u32 s33, s33, s34')
    for q in range(5):
        a.e(f'v_add_u32 v{8+q}, s33, v{8+q}')
    a.e('s_mul_i32 s32, s30, 25600')
    for m in range(5):
        a.e(f's_mov_b32 s35, {m*40960}')
        for q in range(5):
            a.e(f's_add_u32 m0, s32, {m*5120 + q*1024}')
            a.e('s_nop 0')
            a.vmem(f'buffer_load_dwordx4 v{8+q}, s[16:19], s35 offen lds', ('wo', m))
    issue_bd(1)
    a.e('v_lshrrev_b32 v16, 4, v1')
    a.e('v_and_b32 v17, 15, v1')
    a.e('v_lshrrev_b32 v18, 2, v17')
    a.e('v_and_b32 v17, 3, v17')
    a.e('v_lshlrev_b32 v19, 2, v16')
    a.e('v_add_u32 v19, v19, v18')
    a.e('v_mul_u32_u24 v19, 160, v19')
    a.e('v_lshlrev_b32 v17, 3, v17')
    a.e('v_add_u32 v19, v19, v17')
    a.e('v_add_u32 v13, s32, v19')
    NUM = lambda i: 16 + 4*i
    DEN = lambda i: 32 + 4*i
    OF  = lambda i: 48 + 4*i
    WF  = lambda nt: 224 + 4*nt
    ACC = lambda i, nt: (i*5+nt)*4
    for m in range(5):
        a.wait_vm(('bd', m))
        fr = bd_frags(m)
        for h in range(2):
            nt = 2*m + h
            ks = [(k, kt) for k, (kt, n2) in enumerate(fr) if n2 == nt]
            for idx, (k, kt) in enumerate(ks):
                for i in range(4):
                    cin = '0' if idx == 0 else f'v[{NUM(i)}:{NUM(i)+3}]'
                    b = BDR(m & 1, k)
                    a.e(f'v_mfma_f32_16x16x32_bf16 v[{NUM(i)}:{NUM(i)+3}], v[{b}:{b+3}], v[{PQ(i,kt)}:{PQ(i,kt)+3}], {cin}')
                for i in range(4):
                    cin = '0' if idx == 0 else f'v[{DEN(i)}:{DEN(i)+3}]'
                    b = BDR(m & 1, 4+k)
                    a.e(f'v_mfma_f32_16x16x32_bf16 v[{DEN(i)}:{DEN(i)+3}], v[{b}:{b+3}], v[{PQ(i,kt)}:{PQ(i,kt)+3}], {cin}')
            a.e('s_nop 7'); a.e('s_nop 1')
            for i in range(4):
                a.e(f'v_cvt_pk_bf16_f32 v{64+i}, v{DEN(i)}, v{DEN(i)}')
            for i in range(4):
                a.e(f'v_cvt_pk_bf16_f32 v{68+2*i}, v{NUM(i)}, v{NUM(i)+1}')
                a.e(f'v_cvt_pk_bf16_f32 v{69+2*i}, v{NUM(i)+2}, v{NUM(i)+3}')
            for i in range(4):
                a.e(f'v_lshlrev_b32 v{64+i}, 16, v{64+i}')
            for i in range(4):
                a.e(f'v_add_f32 v{64+i}, s39, v{64+i}')
            for i in range(4):
                unpack(a, NUM(i), NUM(i)+1, 68+2*i); unpack(a, NUM(i)+2, NUM(i)+3, 69+2*i)
            for i in range(4):
                a.e(f'v_cvt_pk_bf16_f32 v{64+i}, v{64+i}, v{64+i}')
            for i in range(4):
                a.e(f'v_lshlrev_b32 v{64+i}, 16, v{64+i}')
            for i in range(4):
                a.e(f'v_rcp_f32 v{64+i}, v{64+i}')
            a.e('s_nop 0')
            for i in range(4):
                for r in range(4):
                    a.e(f'v_mul_f32 v{NUM(i)+r}, v{NUM(i)+r}, v{64+i}')
            for i in range(4):
                a.e(f'v_cvt_pk_bf16_f32 v{OF(i)+2*h}, v{NUM(i)}, v{NUM(i)+1}')
                a.e(f'v_cvt_pk_bf16_f32 v{OF(i)+2*h+1}, v{NUM(i)+2}, v{NUM(i)+3}')
        if m + 2 <= 4:
            issue_bd(m+2)
        a.wait_vm(('wo', m))
        for nt in range(5):
            off = m*5120 + nt*32
            a.e(f'ds_read_b64_tr_b16 v[{WF(nt)}:{WF(nt)+1}], v13 offset:{off}')
            a.e(f'ds_read_b64_tr_b16 v[{WF(nt)+2}:{WF(nt)+3}], v13 offset:{off+2560}')
        a.e('s_waitcnt lgkmcnt(0)')
        for nt in range(5):
            for i in range(4):
                ac = ACC(i, nt)
                cin = '0' if m == 0 else f'a[{ac}:{ac+3}]'
                a.e(f'v_mfma_f32_16x16x32_bf16 a[{ac}:{ac+3}], v[{WF(nt)}:{WF(nt)+3}], v[{OF(i)}:{OF(i)+3}], {cin}')
    a.e('s_lshl_b32 s33, s28, 2')
    a.e('s_add_u32 s33, s33, s30')
    a.e('s_mul_i32 s34, s33, 40')
    a.e('s_mul_i32 s35, s29, 5')
    a.e('s_add_u32 s34, s34, s35')
    a.e('s_lshl_b32 s34, s34, 9')
    a.e('v_lshlrev_b32 v14, 3, v1')
    a.e('v_add_u32 v14, s34, v14')
    a.e('s_lshl_b32 s34, s33, 4')
    a.e('v_and_b32 v15, 15, v1')
    a.e('v_add_u32 v15, s34, v15')
    a.e('v_lshlrev_b32 v123, 2, v15')
    for nt in range(5):
        a.e(f'buffer_load_dwordx2 v[{112+2*nt}:{113+2*nt}], v14, s[24:27], 0 offen offset:{nt*512}')
    a.e('buffer_load_dword v122, v123, s[44:47], 0 offen')
    a.e('v_mul_u32_u24 v15, 1280, v15')
    a.e('v_lshrrev_b32 v125, 4, v1')
    a.e('v_lshlrev_b32 v125, 3, v125')
    a.e('v_add_u32 v15, v15, v125')
    a.e('s_mul_i32 s34, s29, 160')
    a.e('v_add_u32 v124, s34, v15')
    a.e('s_nop 7'); a.e('s_nop 1')
    for t in range(80):
        a.e(f'v_accvgpr_read_b32 v{144+t}, a{t}')
    final_reduce(a, 144, 25600)
    a.e('s_waitcnt vmcnt(0)')
    a.e('v_sub_f32 v123, 1.0, v122')
    for nt in range(5):
        a.e(f'v_cvt_pk_bf16_f32 v{32+2*nt}, v{8+4*nt}, v{9+4*nt}')
        a.e(f'v_cvt_pk_bf16_f32 v{33+2*nt}, v{10+4*nt}, v{11+4*nt}')
    a.e('v_cvt_pk_bf16_f32 v123, v123, v123')
    for nt in range(5):
        unpack(a, 8+4*nt, 9+4*nt, 32+2*nt); unpack(a, 10+4*nt, 11+4*nt, 33+2*nt)
        unpack(a, 44+4*nt, 45+4*nt, 112+2*nt); unpack(a, 46+4*nt, 47+4*nt, 113+2*nt)
    a.e('v_lshlrev_b32 v123, 16, v123')
    for nt in range(5):
        for r in range(4):
            a.e(f'v_mul_f32 v{8+4*nt+r}, v122, v{8+4*nt+r}')
    for nt in range(5):
        for r in range(4):
            a.e(f'v_mul_f32 v{44+4*nt+r}, v123, v{44+4*nt+r}')
    for nt in range(5):
        a.e(f'v_cvt_pk_bf16_f32 v{32+2*nt}, v{8+4*nt}, v{9+4*nt}')
        a.e(f'v_cvt_pk_bf16_f32 v{33+2*nt}, v{10+4*nt}, v{11+4*nt}')
        a.e(f'v_cvt_pk_bf16_f32 v{112+2*nt}, v{44+4*nt}, v{45+4*nt}')
        a.e(f'v_cvt_pk_bf16_f32 v{113+2*nt}, v{46+4*nt}, v{47+4*nt}')
    for nt in range(5):
        unpack(a, 8+4*nt, 9+4*nt, 32+2*nt); unpack(a, 10+4*nt, 11+4*nt, 33+2*nt)
        unpack(a, 44+4*nt, 45+4*nt, 112+2*nt); unpack(a, 46+4*nt, 47+4*nt, 113+2*nt)
    for nt in range(5):
        for q in (0, 2):
            a.e(f'v_pk_add_f32 v[{8+4*nt+q}:{9+4*nt+q}], v[{8+4*nt+q}:{9+4*nt+q}], v[{44+4*nt+q}:{45+4*nt+q}]')
    for nt in range(5):
        a.e(f'v_cvt_pk_bf16_f32 v{32+2*nt}, v{8+4*nt}, v{9+4*nt}')
        a.e(f'v_cvt_pk_bf16_f32 v{33+2*nt}, v{10+4*nt}, v{11+4*nt}')
    for nt in range(5):
        a.e(f'buffer_store_dwordx2 v[{32+2*nt}:{33+2*nt}], v124, s[48:51], 0 offen offset:{nt*32}')
    a.label('K3_done')
    a.e('s_endpgm')
    return a

def main(path):
    out = [HEADER.rstrip('\n')]
    out.append('; @launch kernel=k1_kernel grid=(256,1,1) block=(256,1,1) lds=131072')
    out.append(f'; @launch kernel=k2_kernel grid=({K2_GRID},1,1) block=(256,1,1) lds=81920')
    out.append('; @launch kernel=k3_kernel grid=(256,1,1) block=(256,1,1) lds=102400')
    out.append('.amdgcn_target "amdgcn-amd-amdhsa--gfx950"')
    out.append('.text')
    for g in (gen_k1, gen_k2, gen_k3):
        out += g().lines
    out.append(kd('k1_kernel', 248))
    out.append(kd('k2_kernel', 208))
    k3 = kd('k3_kernel', 244).replace('next_free_vgpr 244', 'next_free_vgpr 324')
    out.append(k3)
    open(path, 'w').write('\n'.join(out) + '\n')

if __name__ == '__main__':
    main(sys.argv[1] if len(sys.argv) > 1 else 'k.s')
```
